```python
import torch

def _softmax(x, axis=-1):
    return torch.softmax(x, dim=axis)
def _gelu(x):
    return torch.nn.functional.gelu(x, approximate="tanh")
def _silu(x):
    return torch.nn.functional.silu(x)
def _sigmoid(x):
    return torch.sigmoid(x)
def _layernorm(x, axis=-1, eps=1e-5):
    m = x.mean(dim=axis, keepdim=True)
    v = x.var(dim=axis, keepdim=True, unbiased=False)
    return (x - m) / torch.sqrt(v + eps)
def _scatter_add(tgt, idx, src, axis=0):
    return tgt.clone().index_add_(axis, idx, src)
def _segment_sum(src, seg, n):
    out = torch.zeros((n,) + src.shape[1:], dtype=src.dtype)
    return out.index_add_(0, seg, src)
def _pad(x, pw):
    flat = tuple(v for pair in reversed(pw) for v in pair)
    return torch.nn.functional.pad(x, flat)

kernel_name = 'concat_heads__grouped_kv_mqa__sliding_block__prompt'

def setup_inputs():

    _w = (lambda a: (lambda t: t.to(torch.bfloat16) if t.is_floating_point() else t)(torch.as_tensor(a)))
    def _A_setup():
        B, S, D, H = 1, 2048, 512, 32
        Dh = D // H
        return {
            "x": _w((lambda *s: torch.randn(*s, dtype=torch.bfloat16) * 0.05)(B, S, D)),
            "wq": _w((lambda *s: torch.randn(*s, dtype=torch.bfloat16) * 3.2)(D, H * Dh)),
            "wk": _w((lambda *s: torch.randn(*s, dtype=torch.bfloat16) * 3.2)(D, Dh)),
            "wv": _w((lambda *s: torch.randn(*s, dtype=torch.bfloat16) * 1.6)(D, Dh)),
            "wo": _w((lambda *s: torch.randn(*s, dtype=torch.bfloat16) * 1.6)(H * Dh, D)),
        }
    _A_in = _A_setup()

    def _B_setup():
        B, S, D = 1, 2048, 512
        return {
            "x": _w((lambda *s: torch.randn(*s, dtype=torch.bfloat16) * 0.1)(B, S, D)),
            "wqkv": _w((lambda *s: torch.randn(*s, dtype=torch.bfloat16) * 0.8)(D, 3 * D)),
            "wo": _w((lambda *s: torch.randn(*s, dtype=torch.bfloat16) * 0.8)(D, D)),
        }
    _B_in = _B_setup()

    return {
        "A_x": _A_in["x"],
        "A_wq": _A_in["wq"],
        "A_wk": _A_in["wk"],
        "A_wv": _A_in["wv"],
        "A_wo": _A_in["wo"],
        "B_x": _B_in["x"],
        "B_wqkv": _B_in["wqkv"],
        "B_wo": _B_in["wo"],
    }

def reference(A_x, A_wq, A_wk, A_wv, A_wo, B_x, B_wqkv, B_wo):
    def _A_ref(x, wq, wk, wv, wo):
        B, S, D = x.shape
        H = 32
        Dh = D // H
        q = (lambda x, *d: x.permute(*d))((x @ wq).reshape(B, S, H, Dh), 0, 2, 1, 3)
        k = x @ wk
        v = x @ wv
        scores = torch.einsum("bhqd,bkd->bhqk", q, k) * (Dh ** -0.5)
        p = _softmax(scores, axis=-1)
        o = torch.einsum("bhqk,bkd->bhqd", p, v)
        return (lambda x, *d: x.permute(*d))(o, 0, 2, 1, 3).reshape(B, S, H * Dh) @ wo

    def _B_ref(x, wqkv, wo):
        B, S, D = x.shape
        H = 32; Dh = D // H; W = 256
        qkv = (lambda x, *d: x.permute(*d))((x @ wqkv).reshape(B, S, 3, H, Dh), 2, 0, 3, 1, 4)
        q, k, v = qkv[0], qkv[1], qkv[2]
        scores = torch.einsum("bhqd,bhkd->bhqk", q, k) * (Dh ** -0.5)
        idx = torch.arange(S)
        mask = (idx[:, None] - idx[None, :] >= 0) & (idx[:, None] - idx[None, :] < W)
        scores = torch.where(mask[None, None], scores, -1e9)
        p = _softmax(scores, axis=-1)
        o = torch.einsum("bhqk,bhkd->bhqd", p, v)
        return (lambda x, *d: x.permute(*d))(o, 0, 2, 1, 3).reshape(B, S, D) @ wo

    a = _A_ref(A_x, A_wq, A_wk, A_wv, A_wo)
    b = _B_ref(B_x, B_wqkv, B_wo)
    return torch.concatenate([a, b], axis=-1)
```

```python
NAME = "concat_heads__grouped_kv_mqa__sliding_block__prompt"
QA, QB, KB, VB, KA, VA, OA, OB = 0x0, 0x200000, 0x400000, 0x600000, 0x800000, 0x810000, 0x900000, 0xB00000
WS_USED = 0xD00000
import struct, math
def f2u(f): return struct.unpack("<I", struct.pack("<f", f))[0]
QSCALE = f2u(0.25 * math.log2(math.e))

class Asm:
    def __init__(s): s.L = []
    def __call__(s, t):
        for l in t.strip("\n").split("\n"):
            l = l.strip()
            if l: s.L.append(l if l.endswith(":") else "    " + l)
    def text(s): return "\n".join(s.L) + "\n"

def vr(a, n=1): return f"v{a}" if n == 1 else f"v[{a}:{a+n-1}]"
def ar(a, n=1): return f"a{a}" if n == 1 else f"a[{a}:{a+n-1}]"
def sr(a, n=1): return f"s{a}" if n == 1 else f"s[{a}:{a+n-1}]"

def srd(A, d, base, nbytes):
    A(f"s_mov_b32 s{d}, s{base}\ns_and_b32 s{d+1}, s{base+1}, 0xffff\ns_mov_b32 s{d+2}, {hex(nbytes)}\ns_mov_b32 s{d+3}, 0x20000")

def header(A, label):
    A.L.append(f".globl {label}\n.p2align 8\n.type {label},@function\n{label}:")

def descriptor(label, vgpr, accum, sgpr=96):
    return f""".p2align 6
.amdhsa_kernel {label}
  .amdhsa_next_free_vgpr {vgpr}
  .amdhsa_next_free_sgpr {sgpr}
  .amdhsa_accum_offset {accum}
  .amdhsa_group_segment_fixed_size 0
  .amdhsa_kernarg_size 88
  .amdhsa_user_sgpr_count 2
  .amdhsa_user_sgpr_kernarg_segment_ptr 1
  .amdhsa_system_sgpr_workgroup_id_x 1
.end_amdhsa_kernel
"""

import os
DIAG = int(os.environ.get("DIAG", "0"))
if DIAG: WS_USED = 0x1000000
def stamp(A, i, real=False):
    if DIAG: A(f"s_mem{'real' if real else ''}time s[{76+2*i}:{77+2*i}]")
def stamp_flush(A, kern, srdreg, wave_s, wpw):
    if not DIAG: return
    if DIAG == 2:
        global _u
        _u = globals().get("_u", 0) + 1
        A(f"s_cmp_lg_u32 s2, 5\ns_cbranch_scc1 dbg_skip{_u}\ns_load_dwordx2 s[68:69], s[0:1], 72\ns_waitcnt lgkmcnt(0)")
        srd(A, 64, 68, 256)
        for i in range(10): A(f"s_sub_u32 s74, s{76+2*i}, s{76 if i < 8 else 92}\nv_mov_b32 v{240+i}, s74")
        A(f"v_mov_b32 v250, 0\ns_mov_b64 exec, 1")
        for i in range(0, 10, 2): A(f"buffer_store_dwordx2 v[{240+i}:{241+i}], v250, s[64:67], 0 offen offset:{4*i}")
        A(f"dbg_skip{_u}:")
        return
    A(f"s_waitcnt lgkmcnt(0)\ns_mul_i32 s74, s2, {wpw}\ns_add_u32 s74, s74, s{wave_s}\ns_lshl_b32 s74, s74, 6\ns_add_u32 s74, s74, {hex(0xE00000 + kern*0x20000)}")
    for i in range(10): A(f"v_mov_b32 v{240+i}, s{76+2*i}")
    A(f"v_mov_b32 v250, 0\ns_mov_b64 exec, 1")
    for i in range(0, 10, 2): A(f"buffer_store_dwordx2 v[{240+i}:{241+i}], v250, s[{srdreg}:{srdreg+3}], s74 offen offset:{4*i}")
```

```python
from common import *
LDS = 131072
NEG = 0xFF800000
ONES = 0x3F803F80
S0, S1 = 16, 32
CB = 48
OA_ = 64
QF = 80
ML, MU = 88, 104
KB_ = 120
VB_ = 156
IDX = 12
def gen(A, label="attn_kernel"):
    header(A, label)
    A(f"""
    s_cmp_ge_u32 s2, 256
    s_cbranch_scc1 {label}_end
    s_load_dwordx2 s[4:5], s[0:1], 80
    v_lshrrev_b32 v1, 6, v0
    v_and_b32 v0, 63, v0
    s_and_b32 s6, s2, 3
    v_readfirstlane_b32 s7, v1
    s_bfe_u32 s8, s2, 0x10002
    s_lshl_b32 s8, s8, 5
    s_lshr_b32 s9, s2, 3
    s_add_u32 s8, s8, s9
    s_lshl_b32 s6, s6, 3
    s_add_u32 s6, s6, s7
    v_lshlrev_b32 v2, 4, v0
    v_and_b32 v3, 15, v0
    v_lshlrev_b32 v3, 4, v3
    v_lshrrev_b32 v1, 5, v0
    v_lshl_add_u32 v3, v1, 8, v3
    s_mov_b32 s16, 0x0000ffff
    s_mov_b32 s17, 0x0000ffff
    s_lshl_b32 s10, s6, 16
    s_lshl_b32 s11, s8, 10
    s_add_u32 s10, s10, s11
    s_waitcnt lgkmcnt(0)
    """)
    srd(A, 12, 4, WS_USED)
    stamp(A, 0); stamp(A, 8, True)
    A(f"s_add_u32 s18, s10, {hex(QB)}\nbuffer_load_dwordx4 {vr(QF,4)}, v2, s[12:15], s18 offen")
    A(f"s_add_u32 s19, s10, {hex(KB)}\ns_sub_u32 s20, s19, s11")
    for k in range(9):
        A(f"buffer_load_dwordx4 {vr(KB_+4*k,4)}, v2, s[12:15], s19 offen")
        A(f"s_add_u32 s18, s19, {hex(VB-KB)}\ns_mov_b64 exec, s[16:17]")
        A(f"buffer_load_dwordx4 {vr(VB_+8*k,4)}, v3, s[12:15], s18 offen")
        A(f"buffer_load_dwordx4 {vr(VB_+8*k+4,4)}, v3, s[12:15], s18 offen offset:512")
        A("s_mov_b64 exec, -1")
        if k < 8: A("s_sub_u32 s19, s19, 0x400\ns_max_i32 s19, s19, s20")
    A(f"buffer_load_dwordx4 {vr(QF+4,4)}, v2, s[12:15], s10 offen")
    A(f"s_lshl_b32 s21, s7, 14\ns_add_u32 s22, s21, {hex(KA)}")
    for q in range(16):
        if q % 4 == 0:
            A(f"s_add_u32 m0, s21, {q*1024}\ns_add_u32 s23, s22, {q*1024}")
        A(f"buffer_load_dwordx4 v2, s[12:15], s23 offen offset:{(q%4)*1024} lds")
    A(f"s_not_b64 exec, s[16:17]\ns_mov_b32 s24, {hex(ONES)}\ns_mov_b32 s25, {hex(ONES)}")
    for r in range(VB_, VB_ + 72, 2): A(f"v_mov_b64 {vr(r,2)}, s[24:25]")
    A(f"s_mov_b64 exec, -1\nv_mov_b32 v{IDX}, 0xdddddddd")
    A(f"v_and_b32 v4, 31, v0\nv_lshlrev_b32 v5, 3, v1\nv_sub_u32 v4, v4, v5\nv_mov_b32 v6, {hex(NEG)}\nv_mov_b32 v7, 0")
    for i in range(16):
        kc = 16 * (i >> 3) + 4 * ((i >> 2) & 1) + (i & 3)
        A(f"v_cmp_le_i32 s[26:27], {kc}, v4\ns_nop 1" if True else "")
        A(f"v_cndmask_b32 v{ML+i}, v6, v7, s[26:27]\nv_cndmask_b32 v{MU+i}, v7, v6, s[26:27]")
    A("s_min_u32 s28, s8, 8\ns_mov_b32 s29, 0")
    for r in range(CB, CB + 16, 2): A(f"v_mov_b64 {vr(r,2)}, 0")

    def qk(dst, kf, qf, c): A(f"v_mfma_f32_32x32x16_bf16 {vr(dst,16)}, {vr(kf,4)}, {vr(qf,4)}, {vr(c,16)}")
    def sm(vf, p): A(f"v_smfmac_f32_32x32x32_bf16 {vr(OA_,16)}, {vr(vf,4)}, {vr(p,8)}, v{IDX}")
    def ex(b, a, e):
        for i in range(a, e): A(f"v_exp_f32 v{b+i}, v{b+i}")
    def zero_o():
        for r in range(OA_, OA_ + 16, 2): A(f"v_mov_b64 {vr(r,2)}, 0")
    def rowmax(dst, b, first):
        A(f"v_max3_f32 v8, v{b}, v{b+1}, v{b+2}\nv_max3_f32 v9, v{b+3}, v{b+4}, v{b+5}")
        A(f"v_max3_f32 v8, v8, v{b+6}, v{b+7}\nv_max3_f32 v9, v9, v{b+8}, v{b+9}")
        A(f"v_max3_f32 v8, v8, v{b+10}, v{b+11}\nv_max3_f32 v9, v9, v{b+12}, v{b+13}")
        A(f"v_max3_f32 v8, v8, v{b+14}, v{b+15}")
        A(f"v_max_f32 v{dst}, v8, v9" if first else f"v_max3_f32 v{dst}, v8, v9, v{dst}")
    def crossmax(r):
        A(f"v_mov_b32 v8, v{r}\ns_nop 1\nv_permlane32_swap_b32 v8, v{r}\ns_nop 1\nv_max_f32 v{r}, v8, v{r}")
    def finish(tag, lo_check, obase):
        A(f"""s_nop 15
        v_max3_f32 v8, |v{OA_}|, |v{OA_+1}|, |v{OA_+2}|
        v_max3_f32 v9, |v{OA_+3}|, |v{OA_+4}|, |v{OA_+5}|
        v_max3_f32 v8, v8, |v{OA_+6}|, |v{OA_+7}|
        v_max3_f32 v8, v8, v9, v{OA_+8}
        v_add_f32 v9, v{OA_}, v{OA_+1}
        v_add_f32 v10, v{OA_+2}, v{OA_+3}
        v_add_f32 v11, v{OA_+4}, v{OA_+5}
        v_add_f32 v9, v9, v10
        v_add_f32 v10, v{OA_+6}, v{OA_+7}
        v_add_f32 v9, v9, v11
        v_add_f32 v10, v10, v{OA_+8}
        v_add_f32 v9, v9, v10
        s_mov_b32 s30, {hex(f2u(2.0**110))}
        v_rcp_f32 v11, v{OA_+8}
        v_cmp_ngt_f32 s[26:27], s30, v8
        v_cmp_u_f32 s[32:33], v9, v9
        s_or_b64 s[26:27], s[26:27], s[32:33]""")
        if lo_check:
            A(f"s_mov_b32 s30, {hex(f2u(2.0**-64))}\nv_cmp_gt_f32 s[32:33], s30, v{OA_+8}\ns_or_b64 s[26:27], s[26:27], s[32:33]")
        A(f"""s_cmp_lg_u64 s[26:27], 0
        s_cselect_b32 s30, 1, 0
        s_andn2_b32 s30, s30, s29
        s_cbranch_scc1 {label}_{tag}_retry""")
        for i in range(8): A(f"v_mul_f32 v{OA_+i}, v{OA_+i}, v11")
        for i in range(4): A(f"v_cvt_pk_bf16_f32 v{8+i}, v{OA_+2*i}, v{OA_+2*i+1}")
        A(f"""s_lshl_b32 s30, s8, 15
        s_lshl_b32 s31, s6, 10
        s_add_u32 s30, s30, s31
        s_add_u32 s30, s30, {hex(obase)}
        buffer_store_dwordx4 v[8:11], v2, s[12:15], s30 offen""")

    SB = [S0, S1]
    A(f"{label}_B:")
    zero_o()
    stamp(A, 1)
    A("s_waitcnt vmcnt(43)")
    stamp(A, 2)
    qk(S0, KB_, QF, ML)
    for k in range(9):
        X, Y = SB[k & 1], SB[(k + 1) & 1]
        if k < 8:
            A(f"s_waitcnt vmcnt({max(17, 40 - 3 * k)})")
            qk(Y, KB_ + 4 * (k + 1), QF, MU if k == 7 else CB)
        else:
            A("s_waitcnt vmcnt(17)")
        if k == 0: A("s_nop 10")
        ex(X, 0, 10); sm(VB_ + 8 * k, X); ex(X, 10, 16)
        A("s_nop 1"); sm(VB_ + 8 * k + 4, X + 8)
        if k < 8: A(f"s_cmp_eq_u32 s28, {k}\ns_cbranch_scc1 {label}_B_fin")
    A(f"{label}_B_fin:")
    finish("B", True, OB)
    QAF = QF + 4
    KS = [KB_, KB_ + 4]; VS = [VB_, VB_ + 8]
    stamp(A, 3)
    A(f"""s_waitcnt vmcnt(0)
    s_barrier
    v_add_u32 v5, 0x10000, v3
    ds_read_b128 {vr(KS[0],4)}, v2
    s_mov_b32 s29, 0""")
    for r in range(S1, S1 + 16, 2): A(f"v_mov_b64 {vr(r,2)}, 0")
    A("s_waitcnt lgkmcnt(0)")
    qk(S0, KS[0], QAF, S1)
    A("s_nop 15")
    rowmax(10, S0, True); crossmax(10)
    A("v_add_f32 v10, 0x42800000, v10")
    A(f"{label}_A_go:")
    A("v_sub_f32 v8, 0, v10\nv_sub_f32 v9, 0, v10")
    for r in range(CB, CB + 16, 2): A(f"v_mov_b64 {vr(r,2)}, v[8:9]")
    zero_o()
    def ldk(st, off): A(f"ds_read_b128 {vr(KS[st],4)}, v13 offset:{off}")
    def ldv(st, off):
        A(f"s_mov_b64 exec, s[16:17]\nds_read_b128 {vr(VS[st],4)}, v14 offset:{off}\nds_read_b128 {vr(VS[st]+4,4)}, v14 offset:{off+512}\ns_mov_b64 exec, -1")
    A("v_mov_b32 v13, v2\nv_mov_b32 v14, v5")
    ldk(0, 0); ldk(1, 1024); ldv(0, 0)
    for r in range(S1, S1 + 16, 2): A(f"v_mov_b64 {vr(r,2)}, 0")
    A("s_waitcnt lgkmcnt(3)")
    qk(S0, KS[0], QAF, CB)
    stamp(A, 4)
    A("s_mov_b32 s34, 0\ns_nop 12")
    U = 4
    A(f"{label}_A_loop:")
    for u in range(U):
        X, Y = SB[u & 1], SB[(u + 1) & 1]
        c, n = u & 1, (u + 1) & 1
        ex(X, 0, 2)
        sm(VS[n] + 4, Y + 8)
        ldk(c, (u + 2) * 1024)
        ex(X, 2, 4)
        A("s_waitcnt lgkmcnt(1)")
        qk(Y, KS[n], QAF, CB)
        ldv(n, (u + 1) * 1024)
        ex(X, 4, 10)
        sm(VS[c], X)
        ex(X, 10, 16)
    A(f"""v_add_u32 v13, {U*1024}, v13
    v_add_u32 v14, {U*1024}, v14
    s_add_u32 s34, s34, 1
    s_cmp_lt_u32 s34, {64//U}
    s_cbranch_scc1 {label}_A_loop""")
    sm(VS[1] + 4, S1 + 8)
    stamp(A, 5)
    A("s_waitcnt lgkmcnt(0)")
    finish("A", False, OA)
    stamp(A, 6); stamp(A, 9, True); stamp_flush(A, 1, 12, 7, 8)
    A(f"{label}_end:\ns_endpgm")
    A(f"{label}_A_retry:\ns_mov_b32 s29, 1\ns_mov_b32 s34, 0\nv_mov_b32 v13, v2\nv_mov_b32 v10, {hex(NEG)}")
    for r in range(S1, S1 + 16, 2): A(f"v_mov_b64 {vr(r,2)}, 0")
    A(f"{label}_A_rl:\nds_read_b128 {vr(KS[0],4)}, v13\ns_waitcnt lgkmcnt(0)")
    qk(S0, KS[0], QAF, S1)
    A("s_nop 15"); rowmax(10, S0, False)
    A(f"v_add_u32 v13, 1024, v13\ns_add_u32 s34, s34, 1\ns_cmp_lt_u32 s34, 64\ns_cbranch_scc1 {label}_A_rl")
    crossmax(10)
    A(f"s_branch {label}_A_go")
    A(f"{label}_B_retry:\ns_mov_b32 s29, 1\nv_mov_b32 v10, {hex(NEG)}")
    for k in range(9):
        qk(S0, KB_ + 4 * k, QF, ML if k == 0 else (MU if k == 8 else CB))
        A("s_nop 15"); rowmax(10, S0, False)
        if k < 8: A(f"s_cmp_eq_u32 s28, {k}\ns_cbranch_scc1 {label}_B_rd")
    A(f"{label}_B_rd:")
    crossmax(10)
    A("s_nop 7")
    for i in range(16): A(f"v_sub_f32 v{CB+i}, 0, v10\nv_sub_f32 v{ML+i}, v{ML+i}, v10\nv_sub_f32 v{MU+i}, v{MU+i}, v10")
    A(f"s_branch {label}_B")
    return descriptor(label, 256 if DIAG else 228, 256 if DIAG else 228)
```

```python
from common import *
LDS = 65536
OF, ACC, WF = 32, 160, 192
def gen(A, label="out_kernel"):
    header(A, label)
    A(f"""
    s_cmp_ge_u32 s2, 256
    s_cbranch_scc1 {label}_end
    s_load_dwordx2 s[4:5], s[0:1], 32
    s_load_dwordx4 s[8:11], s[0:1], 56
    s_load_dwordx2 s[6:7], s[0:1], 80
    v_lshrrev_b32 v1, 6, v0
    v_and_b32 v0, 63, v0
    s_bfe_u32 s12, s2, 0x10002
    v_readfirstlane_b32 s13, v1
    s_and_b32 s14, s2, 3
    s_lshr_b32 s15, s2, 6
    s_lshl_b32 s14, s14, 2
    s_add_u32 s14, s14, s15
    s_bfe_u32 s15, s2, 0x30003
    s_lshl_b32 s14, s14, 2
    s_add_u32 s14, s14, s13
    v_lshlrev_b32 v2, 4, v0
    v_lshrrev_b32 v3, 3, v0
    v_and_b32 v4, 7, v0
    v_bfe_u32 v5, v0, 4, 1
    v_lshlrev_b32 v5, 2, v5
    v_xor_b32 v4, v4, v5
    v_lshlrev_b32 v4, 4, v4
    v_lshl_add_u32 v3, v3, 10, v4
    s_waitcnt lgkmcnt(0)
    s_cmp_eq_u32 s12, 0
    s_cselect_b32 s4, s4, s8
    s_cselect_b32 s5, s5, s9
    """)
    stamp(A, 0); stamp(A, 8, True)
    srd(A, 16, 4, 0x80000); srd(A, 20, 6, WS_USED); srd(A, 24, 10, 0x400000)
    A(f"""
    s_lshl_b32 s28, s12, 21
    s_lshl_b32 s29, s14, 15
    s_add_u32 s28, s28, s29
    s_add_u32 s28, s28, {hex(OA)}
    s_lshl_b32 s29, s15, 7
    s_lshl_b32 s30, s13, 15
    s_add_u32 s29, s29, s30
    s_lshl_b32 s30, s13, 12
    """)
    for c in range(4):
        for q in range(4):
            A(f"s_add_u32 m0, s30, {c*16384+q*1024}\ns_add_u32 s31, s29, {(c*128+q*8)*1024}")
            A("buffer_load_dwordx4 v3, s[16:19], s31 offen lds")
        for hh in range(8):
            h = c * 8 + hh
            if hh % 4 == 0: A(f"s_add_u32 s31, s28, {h*1024}")
            A(f"buffer_load_dwordx4 {vr(OF+4*h,4)}, v2, s[20:23], s31 offen offset:{(hh%4)*1024}")
    A("""
    v_bfe_u32 v4, v0, 2, 2
    v_lshrrev_b32 v5, 5, v0
    v_lshl_add_u32 v4, v5, 2, v4
    v_lshlrev_b32 v4, 7, v4
    v_and_b32 v5, 1, v0
    v_bfe_u32 v6, v0, 4, 1
    v_lshl_add_u32 v5, v5, 1, v6
    v_bfe_u32 v6, v0, 3, 1
    v_lshl_add_u32 v5, v6, 2, v5
    v_lshl_add_u32 v4, v5, 4, v4
    v_bfe_u32 v6, v0, 1, 1
    v_lshl_add_u32 v4, v6, 3, v4
    v_xor_b32 v5, 64, v4
    """)
    for r in range(ACC, ACC + 32, 2): A(f"v_mov_b64 {vr(r,2)}, 0")
    A("""
    v_and_b32 v6, 31, v0
    v_lshlrev_b32 v6, 11, v6
    v_lshrrev_b32 v7, 5, v0
    v_lshl_add_u32 v6, v7, 5, v6
    s_lshl_b32 s32, s14, 16
    s_lshl_b32 s33, s12, 10
    s_add_u32 s32, s32, s33
    s_lshl_b32 s33, s15, 7
    s_add_u32 s32, s32, s33
    """)
    def rd(h):
        b = WF + (h & 1) * 8
        for t in range(2):
            A(f"ds_read_b64_tr_b16 {vr(b+4*t,2)}, v{4+t} offset:{h*2048}\nds_read_b64_tr_b16 {vr(b+4*t+2,2)}, v{4+t} offset:{h*2048+1024}")
    def mm(h):
        b = WF + (h & 1) * 8
        for t in range(2):
            A(f"v_mfma_f32_32x32x16_bf16 {vr(ACC+16*t,16)}, {vr(b+4*t,4)}, {vr(OF+4*h,4)}, {vr(ACC+16*t,16)}")
    for h in range(32):
        if h % 8 == 0:
            if h == 0: stamp(A, 1)
            A(f"s_waitcnt vmcnt({36-12*(h//8)})\ns_barrier")
            if h < 24: stamp(A, 2 + h // 8)
        rd(h)
        if h > 0:
            A("s_waitcnt lgkmcnt(4)"); mm(h - 1)
    A("s_waitcnt lgkmcnt(0)"); mm(31)
    stamp(A, 5)
    A("s_nop 15")
    for t in range(2):
        for hh in range(2):
            b = 8 + (2 * t + hh) * 4
            for i in range(4): A(f"v_cvt_pk_bf16_f32 v{b+i}, v{ACC+16*t+8*hh+2*i}, v{ACC+16*t+8*hh+2*i+1}")
            A(f"buffer_store_dwordx4 {vr(b,4)}, v6, s[24:27], s32 offen offset:{t*64+hh*16}")
    stamp(A, 6); stamp(A, 9, True); stamp_flush(A, 2, 20, 13, 4)
    A(f"{label}_end:\ns_endpgm")
    return descriptor(label, 256 if DIAG else 208, 256 if DIAG else 208)
```

```python
from common import *
LDS = 147456
def gen(A, label="proj_kernel"):
    header(A, label)
    A(f"""
    s_cmp_ge_u32 s2, 256
    s_cbranch_scc1 {label}_end
    s_load_dwordx8 s[4:11], s[0:1], 0
    s_load_dwordx4 s[12:15], s[0:1], 40
    s_load_dwordx2 s[16:17], s[0:1], 80
    v_lshrrev_b32 v1, 6, v0
    v_and_b32 v0, 63, v0
    s_and_b32 s18, s2, 7
    v_readfirstlane_b32 s19, v1
    s_lshr_b32 s20, s2, 3
    s_and_b32 s21, s20, 3
    s_lshr_b32 s20, s20, 2
    """)
    A("""
    s_sub_u32 s23, s18, 2
    s_lshr_b32 s22, s23, 1
    s_add_u32 s22, s22, 1
    s_and_b32 s23, s18, 1
    s_cmp_lt_u32 s18, 2
    s_cselect_b32 s22, 0, s22
    s_lshl_b32 s23, s23, 3
    s_add_u32 s20, s20, s23
    s_waitcnt lgkmcnt(0)
    s_cmp_eq_u32 s22, 0
    s_cselect_b32 s24, s4, s12
    s_cselect_b32 s25, s5, s13
    s_cselect_b32 s26, s6, s14
    s_cselect_b32 s27, s7, s15
    s_cselect_b32 s28, 1, 3
    s_lshl_b32 s29, s28, 19
    s_lshl_b32 s28, s28, 10
    """)
    stamp(A, 0); stamp(A, 8, True)
    srd(A, 32, 24, 0x200000)
    A("s_mov_b32 s36, s26\ns_and_b32 s37, s27, 0xffff\ns_mov_b32 s38, s29\ns_mov_b32 s39, 0x20000")
    srd(A, 40, 16, WS_USED)
    A("s_cmp_lt_u32 s19, 2\ns_cselect_b32 s30, s8, s10\ns_cselect_b32 s31, s9, s11")
    srd(A, 44, 30, 0x4000)
    A("""
    v_lshrrev_b32 v1, 3, v0
    v_lshrrev_b32 v2, 4, v0
    v_and_b32 v3, 7, v0
    v_xor_b32 v3, v3, v2
    v_lshlrev_b32 v3, 4, v3
    v_lshl_add_u32 v4, v1, 10, v3
    v_xor_b32 v5, 64, v4
    v_add_u32 v5, 0x2000, v5
    s_lshl_b32 s48, s20, 17
    s_lshl_b32 s49, s19, 15
    s_add_u32 s48, s48, s49
    """)
    A("""
    v_and_b32 v3, 15, v0
    v_lshlrev_b32 v1, 2, v2
    v_xor_b32 v3, v3, v1
    v_lshlrev_b32 v3, 4, v3
    v_mul_lo_u32 v1, v2, s28
    v_add_u32 v6, v1, v3
    s_max_u32 s50, s22, 1
    s_sub_u32 s50, s50, 1
    s_lshl_b32 s50, s50, 10
    s_lshl_b32 s51, s21, 8
    s_add_u32 s50, s50, s51
    s_lshl_b32 s51, s19, 4
    s_mul_i32 s51, s51, s28
    s_add_u32 s50, s50, s51
    s_lshl_b32 s51, s28, 2
    s_lshl_b32 s52, s28, 6
    v_lshlrev_b32 v7, 4, v0
    s_and_b32 s53, s19, 1
    s_lshl_b32 s53, s53, 10
    s_lshl_b32 s54, s19, 12
    s_lshl_b32 s55, s19, 10
    """)
    A("""
    v_and_b32 v1, 31, v0
    v_lshrrev_b32 v2, 5, v0
    v_bfe_u32 v3, v0, 1, 3
    v_xor_b32 v3, v3, v2
    v_lshlrev_b32 v3, 4, v3
    v_lshl_add_u32 v3, v1, 7, v3
    s_lshr_b32 s56, s19, 1
    s_lshl_b32 s57, s56, 13
    v_add_u32 v8, s57, v3
    v_xor_b32 v9, 32, v8
    v_xor_b32 v10, 64, v8
    v_xor_b32 v11, 0x60, v8
    """)
    A("""
    v_bfe_u32 v1, v0, 2, 2
    v_bfe_u32 v3, v0, 4, 1
    v_bfe_u32 v12, v0, 1, 1
    v_lshl_add_u32 v3, v3, 1, v12
    s_and_b32 s58, s19, 1
    s_lshl_b32 s59, s58, 3
    v_add_u32 v3, s59, v3
    v_lshlrev_b32 v12, 2, v1
    v_xor_b32 v3, v3, v12
    v_lshl_add_u32 v1, v2, 3, v1
    v_lshlrev_b32 v1, 8, v1
    v_lshl_add_u32 v1, v3, 4, v1
    v_and_b32 v3, 1, v0
    v_lshl_add_u32 v1, v3, 3, v1
    v_add_u32 v12, 0x10000, v1
    v_xor_b32 v13, 64, v12
    """)
    A("""
    v_and_b32 v1, 15, v0
    v_lshrrev_b32 v3, 4, v0
    v_bfe_u32 v14, v0, 1, 3
    v_xor_b32 v14, v14, v3
    v_lshlrev_b32 v14, 4, v14
    v_lshl_add_u32 v14, v1, 7, v14
    s_lshl_b32 s60, s21, 12
    s_lshl_b32 s61, s58, 11
    s_add_u32 s60, s60, s61
    v_add_u32 v14, s60, v14
    v_xor_b32 v15, 64, v14
    v_bfe_u32 v1, v0, 2, 2
    v_lshl_add_u32 v1, v3, 3, v1
    v_lshlrev_b32 v1, 5, v1
    v_and_b32 v3, 3, v0
    v_lshl_add_u32 v1, v3, 3, v1
    s_lshl_b32 s61, s56, 11
    s_add_u32 s61, s61, 0x20000
    v_add_u32 v16, s61, v1
    """)
    XA, WA = [20, 21, 22, 23], [24, 25]
    SET = [32, 48]
    ACC = 96
    for r in range(48, 64): A(f"v_mov_b32 v{r}, 0")
    for r in range(80, 84): A(f"v_mov_b32 v{r}, 0")
    for r in range(ACC, ACC + 64, 2): A(f"v_mov_b64 v[{r}:{r+1}], 0")

    def dma(kv):
        A("s_add_u32 s67, s62, s54\ns_mov_b32 m0, s67\ns_add_u32 s68, s63, 0x4000")
        A("buffer_load_dwordx4 v4, s[32:35], s63 offen lds")
        A("s_add_u32 m0, s67, 0x400\ns_nop 0\nbuffer_load_dwordx4 v5, s[32:35], s63 offen lds")
        A("s_add_u32 m0, s67, 0x800\ns_nop 0\nbuffer_load_dwordx4 v4, s[32:35], s68 offen lds")
        A("s_add_u32 m0, s67, 0xc00\ns_add_u32 s63, s63, 128\nbuffer_load_dwordx4 v5, s[32:35], s68 offen lds")
        A("s_add_u32 m0, s67, 0x10000\ns_add_u32 s68, s64, s51\nbuffer_load_dwordx4 v6, s[36:39], s64 offen lds")
        A("s_add_u32 m0, s67, 0x10400\ns_add_u32 s69, s68, s51\nbuffer_load_dwordx4 v6, s[36:39], s68 offen lds")
        A("s_add_u32 m0, s67, 0x10800\ns_add_u32 s68, s69, s51\nbuffer_load_dwordx4 v6, s[36:39], s69 offen lds")
        A("s_add_u32 m0, s67, 0x10c00\ns_add_u32 s64, s64, s52\nbuffer_load_dwordx4 v6, s[36:39], s68 offen lds")
        if kv:
            A("s_lshr_b32 s67, s62, 2\ns_add_u32 s67, s67, s55\ns_add_u32 m0, s67, 0x20000\ns_nop 0")
            A("buffer_load_dwordx4 v7, s[44:47], s65 offen lds\ns_add_u32 s65, s65, 0x800")
        A("s_add_u32 s62, s62, 0x4000\ns_and_b32 s62, s62, 0xffff")
    def reads(st, s):
        b = SET[st]
        A(f"ds_read_b128 {vr(b,4)}, v{XA[s]}\nds_read_b128 {vr(b+4,4)}, v{XA[s]} offset:4096")
        for t in range(2):
            A(f"ds_read_b64_tr_b16 {vr(b+8+4*t,2)}, v{WA[t]} offset:{s*4096}\nds_read_b64_tr_b16 {vr(b+10+4*t,2)}, v{WA[t]} offset:{s*4096+1024}")
    def mfmas(st, ori):
        b = SET[st]
        for tf in range(2):
            for tr in range(2):
                a = ACC + (tf * 2 + tr) * 16
                w, x = vr(b + 8 + 4 * tf, 4), vr(b + 4 * tr, 4)
                o = (w, x) if ori == 1 else (x, w)
                A(f"v_mfma_f32_32x32x16_bf16 {vr(a,16)}, {o[0]}, {o[1]}, {vr(a,16)}")
    def body(tag, ori, kv):
        n = 9 if kv else 8
        A(f"{label}_{tag}:")
        A("s_mov_b32 s62, 0\ns_mov_b32 s63, s48\ns_mov_b32 s64, s50\ns_mov_b32 s65, s53")
        for i in range(3): dma(kv)
        stamp(A, 1)
        A("s_mov_b32 s70, 0\ns_mov_b32 s71, 0")
        A(f"{label}_{tag}_loop:")
        A(f"""s_cmp_lt_u32 s70, 6
        s_cbranch_scc1 {label}_{tag}_w2
        s_cmp_eq_u32 s70, 6
        s_cbranch_scc1 {label}_{tag}_w1
        s_waitcnt vmcnt(0)
        {label}_{tag}_w1:
        s_waitcnt vmcnt({n})
        {label}_{tag}_w2:
        s_waitcnt vmcnt({2*n}) lgkmcnt(0)
        s_barrier""")
        if DIAG:
            for j, sl in ((0, 2), (1, 3), (7, 4)):
                A(f"s_cmp_lg_u32 s70, {j}\ns_cbranch_scc1 {label}_{tag}_st{j}"); stamp(A, sl); A(f"{label}_{tag}_st{j}:")
        for k in range(4): A(f"v_add_u32 v{XA[k]}, s71, v{8+k}")
        for k in range(2): A(f"v_add_u32 v{WA[k]}, s71, v{12+k}")
        reads(0, 0)
        if kv:
            A("v_add_u32 v26, s71, v14\nv_add_u32 v27, s71, v15\ns_lshr_b32 s72, s71, 2\nv_add_u32 v28, s72, v16")
        mfmas(1, ori)
        A(f"s_cmp_gt_u32 s70, 4\ns_cbranch_scc1 {label}_{tag}_nodma")
        dma(kv)
        A(f"{label}_{tag}_nodma:")
        reads(1, 1)
        A("s_waitcnt lgkmcnt(6)")
        mfmas(0, ori)
        reads(0, 2)
        A("s_waitcnt lgkmcnt(6)")
        mfmas(1, ori)
        if kv:
            A("""ds_read_b128 v[64:67], v26
            ds_read_b128 v[68:71], v27
            ds_read_b64_tr_b16 v[72:73], v28
            ds_read_b64_tr_b16 v[74:75], v28 offset:128
            ds_read_b64_tr_b16 v[76:77], v28 offset:1024
            ds_read_b64_tr_b16 v[78:79], v28 offset:1152""")
        reads(1, 3)
        A("s_waitcnt lgkmcnt(6)")
        mfmas(0, ori)
        if kv:
            A(f"""s_cmp_ge_u32 s19, 2
            s_cbranch_scc1 {label}_kvv
            v_mfma_f32_16x16x32_bf16 v[80:83], v[72:75], v[64:67], v[80:83]
            v_mfma_f32_16x16x32_bf16 v[80:83], v[76:79], v[68:71], v[80:83]
            s_branch {label}_kvd
            {label}_kvv:
            v_mfma_f32_16x16x32_bf16 v[80:83], v[64:67], v[72:75], v[80:83]
            v_mfma_f32_16x16x32_bf16 v[80:83], v[68:71], v[76:79], v[80:83]
            {label}_kvd:""")
        A(f"""s_add_u32 s71, s71, 0x4000
        s_and_b32 s71, s71, 0xffff
        s_add_u32 s70, s70, 1
        s_cmp_lt_u32 s70, 8
        s_cbranch_scc1 {label}_{tag}_loop
        s_waitcnt lgkmcnt(0)""")
        mfmas(1, ori)
        stamp(A, 5)
    A(f"s_cmp_eq_u32 s22, 3\ns_cbranch_scc1 {label}_v\ns_cmp_lg_u32 s22, 0\ns_cbranch_scc1 {label}_qk")
    body("aq", 1, True)
    A(f"""
    s_lshl_b32 s60, s20, 2
    s_add_u32 s60, s60, s21
    s_lshl_b32 s60, s60, 10
    v_and_b32 v1, 15, v0
    v_lshrrev_b32 v2, 4, v0
    v_cvt_pk_bf16_f32 v84, v80, v81
    v_cvt_pk_bf16_f32 v85, v82, v83
    s_cmp_ge_u32 s19, 2
    s_cbranch_scc1 {label}_kvep_v
    """)
    A(f"""
    v_and_b32 v3, 3, v1
    v_bfe_u32 v17, v1, 2, 1
    v_lshl_add_u32 v3, v17, 3, v3
    v_bfe_u32 v17, v1, 3, 1
    v_lshl_add_u32 v3, v17, 2, v3
    v_and_b32 v17, 1, v2
    v_lshl_add_u32 v3, v17, 5, v3
    v_lshlrev_b32 v3, 4, v3
    v_lshrrev_b32 v17, 1, v2
    v_lshl_add_u32 v3, v17, 3, v3
    s_lshl_b32 s61, s58, 8
    s_add_u32 s60, s60, s61
    s_add_u32 s60, s60, {hex(KA)}
    s_branch {label}_kvep_s
    {label}_kvep_v:
    """)
    A(f"""
    v_and_b32 v17, 1, v2
    v_lshlrev_b32 v3, 4, v1
    v_lshl_add_u32 v3, v17, 8, v3
    v_lshrrev_b32 v17, 1, v2
    v_lshl_add_u32 v3, v17, 3, v3
    s_lshl_b32 s61, s58, 9
    s_add_u32 s60, s60, s61
    s_add_u32 s60, s60, {hex(VA)}
    {label}_kvep_s:
    buffer_store_dwordx2 v[84:85], v3, s[40:43], s60 offen
    s_branch {label}_ep1
    """)
    body("qk", 1, False)
    A(f"""{label}_ep1:
    s_cmp_eq_u32 s22, 2
    s_cselect_b32 s62, 1.0, {hex(QSCALE)}
    s_lshl_b32 s63, s22, 21
    s_lshl_b32 s64, s21, 3
    s_lshl_b32 s65, s58, 2
    s_add_u32 s64, s64, s65
    s_lshl_b32 s64, s64, 16
    s_add_u32 s63, s63, s64
    s_lshl_b32 s64, s20, 2
    s_lshl_b32 s65, s56, 1
    s_add_u32 s64, s64, s65
    s_lshl_b32 s64, s64, 10
    s_add_u32 s63, s63, s64
    v_lshlrev_b32 v3, 4, v0
    s_cmp_eq_u32 s22, 2
    s_cbranch_scc0 {label}_ep1b
    v_and_b32 v3, 0x33, v0
    v_bfe_u32 v17, v0, 2, 1
    v_lshl_add_u32 v3, v17, 3, v3
    v_bfe_u32 v17, v0, 3, 1
    v_lshl_add_u32 v3, v17, 2, v3
    v_lshlrev_b32 v3, 4, v3
    {label}_ep1b:
    s_nop 7
    """)
    for tf in range(2):
        for tr in range(2):
            a = ACC + (tf * 2 + tr) * 16
            for hh in range(2):
                t = 32 + ((tf * 4 + tr * 2 + hh) % 4) * 4
                for i in range(8): A(f"v_mul_f32 v{a+8*hh+i}, s62, v{a+8*hh+i}")
                for i in range(4): A(f"v_cvt_pk_bf16_f32 v{t+i}, v{a+8*hh+2*i}, v{a+8*hh+2*i+1}")
                A(f"s_add_u32 s64, s63, {hex((2*tf+hh)*65536 + tr*1024)}")
                A(f"buffer_store_dwordx4 {vr(t,4)}, v3, s[40:43], s64 offen")
    stamp(A, 6); stamp(A, 9, True); stamp_flush(A, 0, 40, 19, 4)
    A("s_endpgm")
    body("v", 2, False)
    A(f"""
    s_lshl_b32 s64, s21, 3
    s_lshl_b32 s65, s58, 2
    s_add_u32 s64, s64, s65
    s_lshl_b32 s63, s64, 16
    s_lshl_b32 s64, s20, 2
    s_lshl_b32 s65, s56, 1
    s_add_u32 s64, s64, s65
    s_lshl_b32 s64, s64, 10
    s_add_u32 s63, s63, s64
    s_add_u32 s63, s63, {hex(VB)}
    v_and_b32 v3, 15, v0
    v_lshlrev_b32 v3, 4, v3
    v_bfe_u32 v17, v0, 4, 1
    v_lshl_add_u32 v3, v17, 16, v3
    v_lshrrev_b32 v17, 5, v0
    v_lshl_add_u32 v3, v17, 8, v3
    s_nop 7
    """)
    for tf in range(2):
        for tr in range(2):
            a = ACC + (tf * 2 + tr) * 16
            for hh in range(2):
                t = 32 + ((tf * 4 + tr * 2 + hh) % 4) * 4
                for i in range(4): A(f"v_cvt_pk_bf16_f32 v{t+i}, v{a+8*hh+2*i}, v{a+8*hh+2*i+1}")
                A(f"s_add_u32 s64, s63, {hex(2*tf*65536 + tr*1024 + hh*512)}")
                A(f"buffer_store_dwordx4 {vr(t,4)}, v3, s[40:43], s64 offen")
    stamp(A, 6); stamp(A, 9, True); stamp_flush(A, 0, 40, 19, 4)
    A(f"{label}_end:\ns_endpgm")
    return descriptor(label, 256 if DIAG else 160, 256 if DIAG else 160)
```

```python
import sys, importlib
from common import *
import k_proj, k_attn, k_out
def build(out, mods):
    ref = open(f"cdna_kernels/{NAME}.s.ref").read().split("\n")
    head = [l for l in ref if l.startswith(";") and "@launch" not in l and "Override" not in l and "grid=ceil" not in l]
    A = Asm(); desc = ""
    for m, label, blk in mods:
        head.append(f"; @launch kernel={label} grid=(256,1,1) block=({blk},1,1) lds={m.LDS}")
    for m, label, blk in mods:
        desc += m.gen(A, label)
    txt = "\n".join(head) + '\n.amdgcn_target "amdgcn-amd-amdhsa--gfx950"\n.text\n' + A.text() + '.section .rodata,"a"\n' + desc
    open(out, "w").write(txt)
if __name__ == "__main__":
    out = sys.argv[1] if len(sys.argv) > 1 else f"cdna_kernels/{NAME}.s"
    build(out, [(k_proj, "proj_kernel", 256), (k_attn, "attn_kernel", 512), (k_out, "out_kernel", 256)])
```
